```python
import torch

def _softmax(x, axis=-1):
    return torch.softmax(x, dim=axis)

def _gelu(x):
    return torch.nn.functional.gelu(x, approximate='tanh')

def _silu(x):
    return torch.nn.functional.silu(x)

def _sigmoid(x):
    return torch.sigmoid(x)

def _layernorm(x, axis=-1, eps=1e-05):
    m = x.mean(dim=axis, keepdim=True)
    v = x.var(dim=axis, keepdim=True, unbiased=False)
    return (x - m) / torch.sqrt(v + eps)

def _scatter_add(tgt, idx, src, axis=0):
    return tgt.clone().index_add_(axis, idx, src)

def _segment_sum(src, seg, n):
    out = torch.zeros((n,) + src.shape[1:], dtype=src.dtype)
    return out.index_add_(0, seg, src)

def _pad(x, pw):
    flat = tuple((v for pair in reversed(pw) for v in pair))
    return torch.nn.functional.pad(x, flat)
kernel_name = 'adaLN_cond__grouped_kv_mqa__glu_gated_reglu__prompt'

def setup_inputs():

    _w = lambda a: (lambda t: t.to(torch.bfloat16) if t.is_floating_point() else t)(torch.as_tensor(a))

    def _A_setup():
        B, S, D, H = (1, 2048, 512, 32)
        Dh = D // H
        return {'x': _w((lambda *s: torch.randn(*s, dtype=torch.bfloat16) * 0.05)(B, S, D)), 'wq': _w((lambda *s: torch.randn(*s, dtype=torch.bfloat16) * 0.1)(D, H * Dh)), 'wk': _w((lambda *s: torch.randn(*s, dtype=torch.bfloat16) * 0.1)(D, Dh)), 'wv': _w((lambda *s: torch.randn(*s, dtype=torch.bfloat16) * 0.1)(D, Dh)), 'wo': _w((lambda *s: torch.randn(*s, dtype=torch.bfloat16) * 0.1)(H * Dh, D))}
    _A_in = _A_setup()

    def _B_setup():
        B, S, D, F = (1, 2048, 512, 1792)
        return {'x': _w((lambda *s: torch.randn(*s, dtype=torch.bfloat16) * 0.05)(B, S, D)), 'W_gate': _w((lambda *s: torch.randn(*s, dtype=torch.bfloat16) * 1.6)(D, F) * (2.0 / D) ** 0.5), 'W_up': _w((lambda *s: torch.randn(*s, dtype=torch.bfloat16) * 1.6)(D, F) * (2.0 / D) ** 0.5), 'W_down': _w((lambda *s: torch.randn(*s, dtype=torch.bfloat16) * 1.6)(F, D) * (1.0 / F) ** 0.5)}
    _B_in = _B_setup()
    return {'A_x': _A_in['x'], 'A_wq': _A_in['wq'], 'A_wk': _A_in['wk'], 'A_wv': _A_in['wv'], 'A_wo': _A_in['wo'], 'B_x': _B_in['x'], 'B_W_gate': _B_in['W_gate'], 'B_W_up': _B_in['W_up'], 'B_W_down': _B_in['W_down'], 'c': _w((lambda *s: torch.randn(*s, dtype=torch.bfloat16) * 0.2)(1, 512) * 8.0), 'w_mod': _w((lambda *s: torch.randn(*s, dtype=torch.bfloat16) * 0.2)(512, 6 * 512) * 512 ** (-0.5) * 8.0)}

def reference(A_x, A_wq, A_wk, A_wv, A_wo, B_x, B_W_gate, B_W_up, B_W_down, c, w_mod):

    def _A_ref(x, wq, wk, wv, wo):
        B, S, D = x.shape
        H = 32
        Dh = D // H
        q = (lambda x, *d: x.permute(*d))((x @ wq).reshape(B, S, H, Dh), 0, 2, 1, 3)
        k = x @ wk
        v = x @ wv
        scores = torch.einsum('bhqd,bkd->bhqk', q, k) * Dh ** (-0.5)
        p = _softmax(scores, axis=-1)
        o = torch.einsum('bhqk,bkd->bhqd', p, v)
        return (lambda x, *d: x.permute(*d))(o, 0, 2, 1, 3).reshape(B, S, H * Dh) @ wo

    def _B_ref(x, W_gate, W_up, W_down):
        gate = torch.einsum('bsd,df->bsf', x, W_gate)
        up = torch.einsum('bsd,df->bsf', x, W_up)
        gate = gate * (lambda x, dt: x.to(dt))(gate > 0, gate.dtype)
        h = gate * up
        return torch.einsum('bsf,fd->bsd', h, W_down)
    x = A_x
    mod = (_silu(c) @ w_mod).reshape(c.shape[0], 6, 1, -1)
    sa, ca, ga, sb, cb, gb = (mod[:, 0].clone(), mod[:, 1].clone(), mod[:, 2].clone(), mod[:, 3].clone(), mod[:, 4].clone(), mod[:, 5].clone())
    h = _layernorm(x, axis=-1) * (1 + ca) + sa
    x = x + ga * _A_ref(h, A_wq, A_wk, A_wv, A_wo)
    h = _layernorm(x, axis=-1) * (1 + cb) + sb
    x = x + gb * _B_ref(h, B_W_gate, B_W_up, B_W_down)
    return x
```

```python
class Asm:
    def __init__(self):
        self.lines = []
        self._lab = 0
    def __call__(self, s=""):
        for l in s.strip("\n").split("\n"):
            l = l.strip()
            if not l: continue
            import re
            m = re.search(r"offset:(\d+)", l)
            if m:
                o = int(m.group(1))
                if l.startswith("buffer_") or l.startswith("global_"): assert o < 4096, l
                elif l.startswith("ds_"): assert o < 65536, l
            if l.endswith(":"): self.lines.append(l)
            else: self.lines.append("    " + l)
    def newlabel(self, base="L"):
        self._lab += 1
        return f"{base}_{self._lab}"
    def text(self): return "\n".join(self.lines) + "\n"

def vr(b, n=1):
    return f"v{b}" if n == 1 else f"v[{b}:{b+n-1}]"
def sr(b, n=1):
    return f"s{b}" if n == 1 else f"s[{b}:{b+n-1}]"
def ar(b, n=1):
    return f"a{b}" if n == 1 else f"a[{b}:{b+n-1}]"

def kernel_begin(a, name):
    a.lines.append(f".globl {name}")
    a.lines.append(".p2align 8")
    a.lines.append(f".type {name},@function")
    a.lines.append(f"{name}:")

def descriptor(name, vgpr, sgpr=102, accum=None, wgy=False):
    if accum is None: accum = (vgpr + 3)//4*4
    s = f""".amdhsa_kernel {name}
  .amdhsa_next_free_vgpr {vgpr}
  .amdhsa_next_free_sgpr {sgpr}
  .amdhsa_accum_offset {accum}
  .amdhsa_group_segment_fixed_size 0
  .amdhsa_kernarg_size 112
  .amdhsa_user_sgpr_count 2
  .amdhsa_user_sgpr_kernarg_segment_ptr 1
  .amdhsa_system_sgpr_workgroup_id_x 1
.end_amdhsa_kernel
"""
    return s

S_X=16; S_WQ=18; S_WK=20; S_WV=22; S_WO=24; S_BX=26; S_WG=28; S_WU=30
S_WD=32; S_C=34; S_WMOD=36; S_OUT=38; S_DBG=40; S_WS=42

def load_kernargs(a):
    a("""
    s_load_dwordx16 s[16:31], s[0:1], 0
    s_load_dwordx8 s[32:39], s[0:1], 64
    s_load_dwordx4 s[40:43], s[0:1], 96
    """)

def ws_ptr(a, sd, off):
    a(f"s_add_u32 s{sd}, s{S_WS}, {off}")
    a(f"s_addc_u32 s{sd+1}, s{S_WS+1}, 0")

def make_srd(a, sd, sbase, off, nbytes):
    if off:
        a(f"s_add_u32 s{sd}, s{sbase}, {off}")
        a(f"s_addc_u32 s{sd+1}, s{sbase+1}, 0")
    else:
        a(f"s_mov_b32 s{sd}, s{sbase}")
        a(f"s_mov_b32 s{sd+1}, s{sbase+1}")
    a(f"s_mov_b32 s{sd+2}, {nbytes}")
    a(f"s_mov_b32 s{sd+3}, 0x00020000")

def wave_sum(a, v, st):
    a(f"s_nop 1")
    a(f"v_add_f32_dpp v{v}, v{v}, v{v} quad_perm:[1,0,3,2] row_mask:0xf bank_mask:0xf")
    a(f"s_nop 1")
    a(f"v_add_f32_dpp v{v}, v{v}, v{v} quad_perm:[2,3,0,1] row_mask:0xf bank_mask:0xf")
    a(f"s_nop 1")
    a(f"v_add_f32_dpp v{v}, v{v}, v{v} row_half_mirror row_mask:0xf bank_mask:0xf")
    a(f"s_nop 1")
    a(f"v_add_f32_dpp v{v}, v{v}, v{v} row_mirror row_mask:0xf bank_mask:0xf")
    a(f"s_nop 1")
    for i in range(4):
        a(f"v_readlane_b32 s{st+i}, v{v}, {16*i}")
    a(f"s_nop 1")
    a(f"v_mov_b32 v{v}, s{st}")
    a(f"v_add_f32 v{v}, s{st+1}, v{v}")
    a(f"v_add_f32 v{v}, s{st+2}, v{v}")
    a(f"v_add_f32 v{v}, s{st+3}, v{v}")

def unpack8(a, src, dst):
    for i in range(4):
        a(f"v_lshlrev_b32 v{dst+2*i}, 16, v{src+i}")
        a(f"v_and_b32 v{dst+2*i+1}, 0xffff0000, v{src+i}")

def round_bf16(a, v, tmp=None):
    a(f"v_cvt_pk_bf16_f32 v{v}, v{v}, v{v}")
    a(f"v_lshlrev_b32 v{v}, 16, v{v}")

WS_MODP = 0x0
WS_XN   = 0x10000
WS_WQKV = 0x210000
WS_WO   = 0x2A0000
WS_WGU  = 0x320000
WS_WD   = 0x6A0000
WS_Q    = 0x860000
WS_KF   = 0xA60000
WS_VF   = 0xA70000
WS_X1   = 0xA80000
WS_H2   = 0xC80000
WS_HF   = 0xE80000
WS_END  = 0x1580000
```

```python
from asmlib import *

N_MOD = 192
N_XN = 256
N_PQKV = 34
N_PWO = 32
N_PGU = 224
N_PWD = 112
K1_GRID = N_MOD + N_XN + N_PQKV + N_PWO + N_PGU + N_PWD
K1_LDS = 16384

def gen_k1(a):
    name = "prep_kernel"
    kernel_begin(a, name)
    load_kernargs(a)
    a(f"s_cmp_ge_u32 s2, {K1_GRID}")
    a("s_cbranch_scc1 K1_END")
    a("v_and_b32 v1, 63, v0")
    a("v_lshrrev_b32 v2, 6, v0")
    a("s_nop 0")
    a("v_readfirstlane_b32 s3, v2")
    a("s_waitcnt lgkmcnt(0)")
    a(f"s_cmp_lt_u32 s2, {N_MOD}")
    a("s_cbranch_scc1 K1_MOD")
    a(f"s_cmp_lt_u32 s2, {N_MOD+N_XN}")
    a("s_cbranch_scc1 K1_XN")
    a("s_branch K1_PACK")

    a("K1_MOD:")
    a("s_mul_i32 s4, s2, 43691")
    a("s_lshr_b32 s4, s4, 21")
    a("s_mul_i32 s5, s4, 48")
    a("s_sub_u32 s5, s2, s5")
    a("v_and_b32 v3, 7, v0")
    a("v_lshrrev_b32 v4, 3, v0")
    a("s_lshl_b32 s6, s4, 7")
    a("v_add_u32 v5, s6, v4")
    a("v_lshlrev_b32 v6, 1, v5")
    a("s_mov_b32 s7, 6144")
    a("v_mul_lo_u32 v7, v5, s7")
    a("s_lshl_b32 s8, s5, 7")
    a("v_lshlrev_b32 v8, 4, v3")
    a("v_add3_u32 v7, v7, v8, s8")
    for p in range(4):
        a(f"global_load_ushort v{10+p}, v6, s[{S_C}:{S_C+1}] offset:{64*p}")
    a(f"s_mov_b32 s10, s{S_WMOD}")
    a(f"s_mov_b32 s11, s{S_WMOD+1}")
    for p in range(4):
        a(f"global_load_dwordx4 v[{16+4*p}:{19+4*p}], v7, s[10:11]")
        if p < 3:
            a("s_add_u32 s10, s10, 196608")
            a("s_addc_u32 s11, s11, 0")
    a("s_waitcnt vmcnt(4)")
    for p in range(4):
        a(f"v_lshlrev_b32 v{10+p}, 16, v{10+p}")
    for p in range(4):
        a(f"v_mul_f32 v{32+p}, 0xbfb8aa3b, v{10+p}")
    for p in range(4):
        a(f"v_exp_f32 v{32+p}, v{32+p}")
    a("s_nop 0")
    for p in range(4):
        a(f"v_add_f32 v{32+p}, 1.0, v{32+p}")
    for p in range(4):
        a(f"v_rcp_f32 v{32+p}, v{32+p}")
    a("s_nop 0")
    for p in range(4):
        a(f"v_mul_f32 v{10+p}, v{10+p}, v{32+p}")
    for p in range(4):
        round_bf16(a, 10+p)
    for j in range(8):
        a(f"v_mov_b32 v{40+j}, 0")
    for p in range(4):
        a(f"s_waitcnt vmcnt({3-p})")
        unpack8(a, 16+4*p, 48)
        for j in range(8):
            a(f"v_fmac_f32 v{40+j}, v{10+p}, v{48+j}")
    a("v_lshlrev_b32 v9, 5, v0")
    a("ds_write_b128 v9, v[40:43]")
    a("ds_write_b128 v9, v[44:47] offset:16")
    a("s_waitcnt lgkmcnt(0)")
    a("s_barrier")
    a("s_cmp_lg_u32 s3, 0")
    a("s_cbranch_scc1 K1_END")
    a("v_lshlrev_b32 v9, 2, v1")
    for r in range(32):
        a(f"ds_read_b32 v{16+r}, v9 offset:{256*r}")
    a("s_waitcnt lgkmcnt(0)")
    for st in (16, 8, 4, 2, 1):
        for r in range(st):
            a(f"v_add_f32 v{16+r}, v{16+r}, v{16+r+st}")
    a("s_mul_i32 s6, s4, 12288")
    a("s_lshl_b32 s7, s5, 8")
    a("s_add_u32 s6, s6, s7")
    a("v_add_u32 v9, s6, v9")
    ws_ptr(a, 10, WS_MODP)
    a("global_store_dword v9, v16, s[10:11]")
    a("s_endpgm")

    a("K1_XN:")
    a(f"s_sub_u32 s4, s2, {N_MOD}")
    a("s_lshl_b32 s4, s4, 3")
    a("s_lshl_b32 s5, s3, 1")
    a("s_add_u32 s4, s4, s5")
    a("s_lshl_b32 s4, s4, 10")
    a("v_lshlrev_b32 v3, 4, v1")
    a("v_add_u32 v3, s4, v3")
    a(f"global_load_dwordx4 v[4:7], v3, s[{S_X}:{S_X+1}]")
    a(f"global_load_dwordx4 v[8:11], v3, s[{S_X}:{S_X+1}] offset:1024")
    ws_ptr(a, 10, WS_XN)
    for r in range(2):
        a(f"s_waitcnt vmcnt({1-r})")
        b = 16 + 16*r
        unpack8(a, 4+4*r, b)
        a(f"v_add_f32 v{b+8}, v{b}, v{b+1}")
        for j in range(2, 8):
            a(f"v_add_f32 v{b+8}, v{b+8}, v{b+j}")
        wave_sum(a, b+8, 4)
        a(f"v_mul_f32 v{b+8}, 0x3b000000, v{b+8}")
        for j in range(8):
            a(f"v_sub_f32 v{b+j}, v{b+j}, v{b+8}")
        a(f"v_mul_f32 v{b+9}, v{b}, v{b}")
        for j in range(1, 8):
            a(f"v_fmac_f32 v{b+9}, v{b+j}, v{b+j}")
        wave_sum(a, b+9, 4)
        a(f"v_mov_b32 v{b+10}, 0x3727c5ac")
        a(f"v_fmac_f32 v{b+10}, 0x3b000000, v{b+9}")
        a(f"v_rsq_f32 v{b+10}, v{b+10}")
        a("s_nop 0")
        for j in range(8):
            a(f"v_mul_f32 v{b+j}, v{b+j}, v{b+10}")
        for j in range(4):
            a(f"v_cvt_pk_bf16_f32 v{48+4*r+j}, v{b+2*j}, v{b+2*j+1}")
        a(f"global_store_dwordx4 v3, v[{48+4*r}:{51+4*r}], s[10:11] offset:{1024*r}")
    a("s_endpgm")

    a("K1_PACK:")
    base = N_MOD + N_XN
    a(f"s_sub_u32 s4, s2, {base}")
    a(f"s_cmp_lt_u32 s4, {N_PQKV}")
    a("s_cbranch_scc1 K1_PQKV")
    a(f"s_sub_u32 s4, s4, {N_PQKV}")
    a(f"s_cmp_lt_u32 s4, {N_PWO}")
    a("s_cbranch_scc1 K1_PWO")
    a(f"s_sub_u32 s4, s4, {N_PWO}")
    a(f"s_cmp_lt_u32 s4, {N_PGU}")
    a("s_cbranch_scc1 K1_PGU")
    a(f"s_sub_u32 s4, s4, {N_PGU}")
    a("s_mul_i32 s5, s4, 9363")
    a("s_lshr_b32 s5, s5, 16")
    a("s_mul_i32 s6, s5, 7")
    a("s_sub_u32 s6, s4, s6")
    a("s_lshl_b32 s7, s5, 6")
    a(f"s_add_u32 s44, s{S_WD}, s7")
    a(f"s_addc_u32 s45, s{S_WD+1}, 0")
    a("s_add_u32 s46, s44, 32")
    a("s_addc_u32 s47, s45, 0")
    a("s_mov_b32 s48, 1024")
    a("s_lshl_b32 s49, s6, 4")
    a("s_mul_i32 s7, s5, 112")
    a("s_add_u32 s7, s7, s49")
    a("s_lshl_b32 s7, s7, 10")
    a(f"s_add_u32 s7, s7, {WS_WD}")
    a(f"s_add_u32 s50, s{S_WS}, s7")
    a(f"s_addc_u32 s51, s{S_WS+1}, 0")
    a("s_mov_b32 s52, 1024")
    a("s_mov_b32 s53, 1")
    a("s_branch K1_PGO")

    a("K1_PQKV:")
    a("s_lshr_b32 s5, s4, 1")
    a("s_and_b32 s6, s4, 1")
    a("s_lshl_b32 s7, s5, 6")
    a(f"s_add_u32 s44, s{S_WQ}, s7")
    a(f"s_addc_u32 s45, s{S_WQ+1}, 0")
    a("s_add_u32 s46, s44, 32")
    a("s_addc_u32 s47, s45, 0")
    a("s_mov_b32 s48, 1024")
    a("s_cmp_lt_u32 s5, 16")
    a("s_cbranch_scc1 K1_PQKV2")
    a(f"s_mov_b32 s44, s{S_WK}")
    a(f"s_mov_b32 s45, s{S_WK+1}")
    a(f"s_mov_b32 s46, s{S_WV}")
    a(f"s_mov_b32 s47, s{S_WV+1}")
    a("s_mov_b32 s48, 32")
    a("K1_PQKV2:")
    a("s_lshl_b32 s49, s6, 4")
    a("s_lshl_b32 s7, s5, 5")
    a("s_add_u32 s7, s7, s49")
    a("s_lshl_b32 s7, s7, 10")
    a(f"s_add_u32 s7, s7, {WS_WQKV}")
    a(f"s_add_u32 s50, s{S_WS}, s7")
    a(f"s_addc_u32 s51, s{S_WS+1}, 0")
    a("s_mov_b32 s52, 1024")
    a("s_mov_b32 s53, 0")
    a("s_branch K1_PGO")

    a("K1_PWO:")
    a("s_lshr_b32 s5, s4, 1")
    a("s_and_b32 s6, s4, 1")
    a("s_lshl_b32 s7, s5, 6")
    a(f"s_add_u32 s44, s{S_WO}, s7")
    a(f"s_addc_u32 s45, s{S_WO+1}, 0")
    a("s_add_u32 s46, s44, 32")
    a("s_addc_u32 s47, s45, 0")
    a("s_mov_b32 s48, 1024")
    a("s_lshl_b32 s49, s6, 4")
    a("s_lshl_b32 s7, s5, 5")
    a("s_add_u32 s7, s7, s49")
    a("s_lshl_b32 s7, s7, 10")
    a(f"s_add_u32 s7, s7, {WS_WO}")
    a(f"s_add_u32 s50, s{S_WS}, s7")
    a(f"s_addc_u32 s51, s{S_WS+1}, 0")
    a("s_mov_b32 s52, 1024")
    a("s_mov_b32 s53, 0")
    a("s_branch K1_PGO")

    a("K1_PGU:")
    a("s_lshr_b32 s5, s4, 1")
    a("s_and_b32 s6, s4, 1")
    a("s_lshl_b32 s7, s5, 5")
    a(f"s_add_u32 s44, s{S_WG}, s7")
    a(f"s_addc_u32 s45, s{S_WG+1}, 0")
    a(f"s_add_u32 s46, s{S_WU}, s7")
    a(f"s_addc_u32 s47, s{S_WU+1}, 0")
    a("s_mov_b32 s48, 3584")
    a("s_lshl_b32 s49, s6, 4")
    a("s_mul_i32 s8, s5, 9363")
    a("s_lshr_b32 s8, s8, 16")
    a("s_mul_i32 s9, s8, 7")
    a("s_sub_u32 s9, s5, s9")
    a("s_mul_i32 s7, s8, 229376")
    a("s_mul_i32 s10, s49, 7168")
    a("s_add_u32 s7, s7, s10")
    a("s_lshl_b32 s10, s9, 10")
    a("s_add_u32 s7, s7, s10")
    a(f"s_add_u32 s7, s7, {WS_WGU}")
    a(f"s_add_u32 s50, s{S_WS}, s7")
    a(f"s_addc_u32 s51, s{S_WS+1}, 0")
    a("s_mov_b32 s52, 7168")
    a("s_mov_b32 s53, 0")

    a("K1_PGO:")
    a("s_lshl_b32 s4, s3, 2")
    a("s_add_u32 s49, s49, s4")
    a("s_mul_i32 s5, s4, s52")
    a("s_add_u32 s50, s50, s5")
    a("s_addc_u32 s51, s51, 0")
    a("v_lshrrev_b32 v3, 2, v1")
    a("v_and_b32 v4, 3, v1")
    a("s_lshl_b32 s5, s49, 4")
    a("v_add_u32 v3, s5, v3")
    a("v_mul_lo_u32 v3, v3, s48")
    a("v_and_b32 v5, 1, v4")
    a("v_lshl_add_u32 v3, v5, 4, v3")
    a("v_cmp_lt_u32 vcc, 1, v4")
    a("v_mov_b32 v6, s44")
    a("v_mov_b32 v7, s45")
    a("v_mov_b32 v8, s46")
    a("v_mov_b32 v9, s47")
    a("v_cndmask_b32 v6, v6, v8, vcc")
    a("v_cndmask_b32 v7, v7, v9, vcc")
    a("v_add_co_u32 v6, vcc, v6, v3")
    a("s_nop 1")
    a("v_addc_co_u32 v7, vcc, 0, v7, vcc")
    a("s_lshl_b32 s5, s48, 4")
    for f in range(4):
        a(f"global_load_dwordx4 v[{16+4*f}:{19+4*f}], v[6:7], off")
        if f < 3:
            a("v_add_co_u32 v6, vcc, s5, v6")
            a("s_nop 1")
            a("v_addc_co_u32 v7, vcc, 0, v7, vcc")
    a("s_lshl_b32 s6, s3, 12")
    a("v_lshlrev_b32 v10, 4, v1")
    a("v_add_u32 v10, s6, v10")
    a("v_lshrrev_b32 v11, 5, v1")
    a("v_bfe_u32 v12, v1, 2, 2")
    a("v_bfe_u32 v13, v1, 4, 1")
    a("v_and_b32 v14, 3, v1")
    a("s_cmp_eq_u32 s53, 0")
    a("s_cselect_b32 s7, 3, 2")
    a("s_cselect_b32 s8, 1, 2")
    a("s_lshl_b32 s8, s8, 8")
    a("v_lshlrev_b32 v11, s7, v11")
    a("v_add_u32 v11, v11, v12")
    a("v_lshlrev_b32 v11, 6, v11")
    a("v_lshl_add_u32 v11, v13, 5, v11")
    a("v_lshl_add_u32 v11, v14, 3, v11")
    a("v_add_u32 v11, s6, v11")
    a("v_add_u32 v12, s8, v11")
    for f in range(4):
        a(f"s_waitcnt vmcnt({3-f})")
        a(f"ds_write_b128 v10, v[{16+4*f}:{19+4*f}] offset:{1024*f}")
    a("s_waitcnt lgkmcnt(0)")
    for f in range(4):
        a(f"ds_read_b64_tr_b16 v[{32+4*f}:{33+4*f}], v11 offset:{1024*f}")
        a(f"ds_read_b64_tr_b16 v[{34+4*f}:{35+4*f}], v12 offset:{1024*f}")
    a("v_lshlrev_b32 v15, 4, v1")
    for f in range(4):
        a(f"s_waitcnt lgkmcnt({6-2*f})")
        a(f"global_store_dwordx4 v15, v[{32+4*f}:{35+4*f}], s[50:51]")
        if f < 3:
            a("s_add_u32 s50, s50, s52")
            a("s_addc_u32 s51, s51, 0")
    a("K1_END:")
    a("s_endpgm")
    return name, 56, K1_GRID, 256, K1_LDS
```

```python
from asmlib import *
import struct
def f32hex(x): return "0x%08x" % struct.unpack("<I", struct.pack("<f", x))[0]
QSCALE = 0.25 * 1.4426950408889634
K2_GRID = 320
HROW = 1040
K2_LDS = 32 * HROW

def load_mod_vec(a, which_list, vlane_off, vload, vdst_list, sbase):
    n = len(which_list)
    idx = 0
    regs = {}
    for wi, which in enumerate(which_list):
        for p in range(4):
            for h in range(2):
                r = vload + (wi*8 + p*2 + h)*4
                off = p*12288 + which*2048 + h*16
                a(f"s_add_u32 s{sbase}, s{S_WS}, {WS_MODP + off}")
                a(f"s_addc_u32 s{sbase+1}, s{S_WS+1}, 0")
                a(f"global_load_dwordx4 v[{r}:{r+3}], v{vlane_off}, s[{sbase}:{sbase+1}]")
    def finish():
        for wi, which in enumerate(which_list):
            d = vdst_list[wi]
            b = vload + wi*32
            for j in range(8):
                r0 = b + (j//4)*4 + (j % 4)
                a(f"v_add_f32 v{d+j}, v{r0}, v{r0+8}")
                a(f"v_add_f32 v{r0+16}, v{r0+16}, v{r0+24}")
            for j in range(8):
                r0 = b + (j//4)*4 + (j % 4)
                a(f"v_add_f32 v{d+j}, v{d+j}, v{r0+16}")
            for j in range(8):
                round_bf16(a, d+j)
    return finish

def gen_k2(a):
    name = "qkv_kernel"
    kernel_begin(a, name)
    load_kernargs(a)
    a(f"s_cmp_ge_u32 s2, {K2_GRID}")
    a("s_cbranch_scc1 K2_END")
    a("v_and_b32 v1, 63, v0")
    a("v_lshrrev_b32 v2, 6, v0")
    a("s_nop 0")
    a("v_readfirstlane_b32 s3, v2")
    a("s_and_b32 s4, s2, 63")
    a("s_lshr_b32 s5, s2, 6")
    a("v_lshlrev_b32 v3, 5, v1")
    a("v_lshlrev_b32 v4, 4, v1")
    a("s_waitcnt lgkmcnt(0)")
    fin = load_mod_vec(a, [0, 1], 3, 16, [112, 120], 6)
    a("s_lshl_b32 s6, s4, 5")
    a("s_add_u32 s6, s6, s3")
    a("s_lshl_b32 s6, s6, 10")
    a(f"s_add_u32 s6, s6, {WS_XN}")
    a(f"s_add_u32 s6, s{S_WS}, s6")
    a(f"s_addc_u32 s7, s{S_WS+1}, 0")
    for i in range(8):
        a(f"global_load_dwordx4 v[{80+4*i}:{83+4*i}], v4, s[6:7]")
        if i < 7:
            a("s_add_u32 s6, s6, 4096")
            a("s_addc_u32 s7, s7, 0")
    a("s_lshl_b32 s8, s5, 2")
    a("s_add_u32 s8, s8, s3")
    a("s_cmp_lt_u32 s5, 4")
    a("s_cselect_b32 s8, s8, 16")
    a("s_cmp_lt_u32 s5, 4")
    a("s_cselect_b32 s9, 0, s3")
    a("s_cmp_ge_u32 s9, 2")
    a("s_cbranch_scc1 K2_NOW")
    a("s_lshl_b32 s6, s8, 15")
    a(f"s_add_u32 s6, s6, {WS_WQKV}")
    a(f"s_add_u32 s6, s{S_WS}, s6")
    a(f"s_addc_u32 s7, s{S_WS+1}, 0")
    for s in range(32):
        a(f"global_load_dwordx4 v[{128+4*s}:{131+4*s}], v4, s[6:7] offset:{1024*(s%4)}")
        if s % 4 == 3 and s < 31:
            a("s_add_u32 s6, s6, 4096")
            a("s_addc_u32 s7, s7, 0")
    a("s_waitcnt vmcnt(40)")
    a("s_branch K2_H")
    a("K2_NOW:")
    a("s_waitcnt vmcnt(8)")
    a("K2_H:")
    fin()
    for j in range(8):
        a(f"v_add_f32 v{120+j}, 1.0, v{120+j}")
    for j in range(8):
        round_bf16(a, 120+j)
    a(f"s_mul_i32 s6, s3, {HROW}")
    a("v_add_u32 v5, s6, v4")
    a("s_cmp_ge_u32 s9, 2")
    a("s_cbranch_scc1 K2_H2")
    a("s_waitcnt vmcnt(32)")
    a("s_branch K2_H3")
    a("K2_H2:")
    a("s_waitcnt vmcnt(0)")
    a("K2_H3:")
    for i in range(8):
        unpack8(a, 80+4*i, 16)
        for j in range(8):
            a(f"v_fma_f32 v{16+j}, v{16+j}, v{120+j}, v{112+j}")
        for j in range(4):
            a(f"v_cvt_pk_bf16_f32 v{24+4*(i%2)+j}, v{16+2*j}, v{16+2*j+1}")
        a(f"ds_write_b128 v5, v[{24+4*(i%2)}:{27+4*(i%2)}] offset:{4*HROW*i}")
    a("s_waitcnt lgkmcnt(0)")
    a("s_barrier")
    a("s_cmp_ge_u32 s9, 2")
    a("s_cbranch_scc1 K2_END")
    a("v_and_b32 v6, 31, v1")
    a("v_lshrrev_b32 v7, 5, v1")
    a(f"s_mov_b32 s6, {HROW}")
    a("v_mul_lo_u32 v8, v6, s6")
    a("v_lshl_add_u32 v8, v7, 4, v8")
    for r in range(16):
        a(f"v_mov_b32 v{112+r}, 0")
    def mfma_loop(swap):
        for s in range(8):
            a(f"ds_read_b128 v[{16+4*s}:{19+4*s}], v8 offset:{32*s}")
        for s in range(32):
            a(f"s_waitcnt vmcnt({31-s}) lgkmcnt({min(7, 31-s)})")
            hf = f"v[{16+4*(s%8)}:{19+4*(s%8)}]"
            wf = f"v[{128+4*s}:{131+4*s}]"
            if not swap:
                a(f"v_mfma_f32_32x32x16_bf16 v[112:127], {wf}, {hf}, v[112:127]")
            else:
                a(f"v_mfma_f32_32x32x16_bf16 v[112:127], {hf}, {wf}, v[112:127]")
            if s + 8 < 32:
                a(f"ds_read_b128 {hf}, v8 offset:{32*(s+8)}")
        a("s_nop 15")
        a("s_nop 3")
    a("s_cmp_lt_u32 s5, 4")
    a("s_cbranch_scc0 K2_KV")
    mfma_loop(False)
    a(f"v_mov_b32 v9, {f32hex(QSCALE)}")
    for r in range(16):
        a(f"v_mul_f32 v{112+r}, v{112+r}, v9")
    for g in range(4):
        a(f"v_cvt_pk_bf16_f32 v{16+2*g}, v{112+4*g}, v{113+4*g}")
        a(f"v_cvt_pk_bf16_f32 v{17+2*g}, v{114+4*g}, v{115+4*g}")
    a("s_lshl_b32 s6, s4, 15")
    a("s_lshl_b32 s7, s8, 6")
    a("s_add_u32 s6, s6, s7")
    a(f"s_add_u32 s6, s6, {WS_Q}")
    a(f"s_add_u32 s6, s{S_WS}, s6")
    a(f"s_addc_u32 s7, s{S_WS+1}, 0")
    a("v_lshlrev_b32 v10, 10, v6")
    a("v_lshl_add_u32 v10, v7, 3, v10")
    for g in range(4):
        a(f"global_store_dwordx2 v10, v[{16+2*g}:{17+2*g}], s[6:7] offset:{16*g}")
    a("s_endpgm")
    a("K2_KV:")
    a("s_cmp_eq_u32 s9, 0")
    a("s_cbranch_scc0 K2_V")
    mfma_loop(False)
    for g in range(2):
        a(f"v_cvt_pk_bf16_f32 v{16+2*g}, v{112+4*g}, v{113+4*g}")
        a(f"v_cvt_pk_bf16_f32 v{17+2*g}, v{114+4*g}, v{115+4*g}")
    a("s_lshl_b32 s6, s4, 10")
    a(f"s_add_u32 s6, s6, {WS_KF}")
    a(f"s_add_u32 s6, s{S_WS}, s6")
    a(f"s_addc_u32 s7, s{S_WS+1}, 0")
    a("v_lshlrev_b32 v10, 4, v6")
    a("v_lshl_add_u32 v10, v7, 3, v10")
    for g in range(2):
        a(f"global_store_dwordx2 v10, v[{16+2*g}:{17+2*g}], s[6:7] offset:{512*g}")
    a("s_endpgm")
    a("K2_V:")
    mfma_loop(True)
    for j in range(2):
        for i in range(4):
            a(f"v_cvt_pk_bf16_f32 v{16+4*j+i}, v{112+8*j+2*i}, v{113+8*j+2*i}")
    a("s_lshl_b32 s6, s4, 10")
    a(f"s_add_u32 s6, s6, {WS_VF}")
    a(f"s_add_u32 s6, s{S_WS}, s6")
    a(f"s_addc_u32 s7, s{S_WS+1}, 0")
    a("v_subrev_u32 v10, 16, v6")
    a("v_lshlrev_b32 v10, 4, v10")
    a("v_lshl_add_u32 v10, v7, 8, v10")
    a("v_cmp_le_u32 vcc, 16, v6")
    a("s_and_saveexec_b64 s[10:11], vcc")
    for j in range(2):
        a(f"global_store_dwordx4 v10, v[{16+4*j}:{19+4*j}], s[6:7] offset:{512*j}")
    a("K2_END:")
    a("s_endpgm")
    return name, 256, K2_GRID, 256, K2_LDS
```

```python
from asmlib import *
from k2 import load_mod_vec

K3_GRID = 256
K3_LDS = 163840
XCH = 131072
OT = 131072 + 20480
OROW = 1040
X1T = 0

QF=4; NEGM=8; S=[24,40]; P=56; O=64; KFR=[80,84]; VFR=[88,96]
VK=2; VV=3; T0=104

def gen_k3(a):
    name = "attn_kernel"
    kernel_begin(a, name)
    load_kernargs(a)
    a(f"s_cmp_ge_u32 s2, {K3_GRID}")
    a("s_cbranch_scc1 K3_END")
    a("v_and_b32 v1, 63, v0")
    a("v_lshrrev_b32 v2, 6, v0")
    a("s_nop 0")
    a("v_readfirstlane_b32 s3, v2")
    a("s_and_b32 s4, s3, 7")
    a("s_lshr_b32 s5, s3, 3")
    a("s_lshl_b32 s6, s2, 3")
    a("s_add_u32 s6, s6, s4")
    a("v_and_b32 v104, 31, v1")
    a("v_lshrrev_b32 v105, 5, v1")
    a("v_lshlrev_b32 v106, 5, v104")
    a("v_lshl_add_u32 v106, v105, 4, v106")
    a("s_waitcnt lgkmcnt(0)")
    a("s_lshl_b32 s7, s6, 10")
    a(f"s_add_u32 s7, s7, {WS_Q}")
    a(f"s_add_u32 s8, s{S_WS}, s7")
    a(f"s_addc_u32 s9, s{S_WS+1}, 0")
    a(f"global_load_dwordx4 v[{QF}:{QF+3}], v106, s[8:9]")
    make_srd(a, 12, S_WS, WS_KF, 131072)
    a("v_lshlrev_b32 v107, 4, v0")
    a("s_lshl_b32 s10, s3, 10")
    for c in (0, 2, 4, 6, 1, 3, 5, 7):
        a(f"s_add_u32 m0, s10, {c*16384}")
        a(f"s_mov_b32 s11, {c*16384}")
        a(f"buffer_load_dwordx4 v107, s[12:15], s11 offen lds")
    a("s_lshl_b32 s11, s5, 15")
    a(f"v_lshlrev_b32 v{VK}, 4, v1")
    a(f"v_add_u32 v{VK}, s11, v{VK}")
    a(f"v_and_b32 v{VV}, 15, v1")
    a(f"v_lshlrev_b32 v{VV}, 4, v{VV}")
    a(f"v_lshl_add_u32 v{VV}, v105, 8, v{VV}")
    a(f"s_add_u32 s11, s11, 65536")
    a(f"v_add_u32 v{VV}, s11, v{VV}")
    a("s_mov_b32 s44, 0x0000ffff")
    a("s_mov_b32 s45, 0x0000ffff")
    a("s_mov_b32 s46, 0")
    for b in VFR:
        for i in range(8):
            a(f"v_mov_b32 v{b+i}, 0x3f803f80")
    for i in range(16):
        a(f"v_mov_b32 v{NEGM+i}, 0")
        a(f"v_mov_b32 v{O+i}, 0")
    a("s_waitcnt vmcnt(4)")
    a("s_barrier")
    a(f"ds_read_b128 v[{KFR[0]}:{KFR[0]+3}], v{VK}")
    a("s_waitcnt lgkmcnt(0)")
    a(f"v_mfma_f32_32x32x16_bf16 v[{S[0]}:{S[0]+15}], v[{KFR[0]}:{KFR[0]+3}], v[{QF}:{QF+3}], v[{NEGM}:{NEGM+15}]")
    a("s_nop 15")
    a("s_nop 3")
    def maxtree(sb, acc, first):
        i = 0
        if first:
            a(f"v_max3_f32 v{acc}, v{sb}, v{sb+1}, v{sb+2}")
            a(f"v_max_f32 v{acc}, v{acc}, v{sb+3}")
            i = 4
        while i < 16:
            a(f"v_max3_f32 v{acc}, v{acc}, v{sb+i}, v{sb+i+1}")
            i += 2
    def crosshalf_max(acc, tmp):
        a(f"v_mov_b32 v{tmp}, v{acc}")
        a("s_nop 1")
        a(f"v_permlane32_swap_b32 v{acc}, v{tmp}")
        a("s_nop 0")
        a(f"v_max_f32 v{acc}, v{acc}, v{tmp}")
    maxtree(S[0], T0, True)
    crosshalf_max(T0, T0+1)
    a(f"v_sub_f32 v{T0}, 0xc2b40000, v{T0}")
    for i in range(16):
        a(f"v_mov_b32 v{NEGM+i}, v{T0}")
    a("K3_MAIN:")
    a("s_mov_b32 s47, 0")
    a("K3_LOOP:")
    a("s_cmp_eq_u32 s47, 4")
    a("s_cbranch_scc0 K3_NOBAR")
    a("s_cmp_eq_u32 s46, 0")
    a("s_cbranch_scc0 K3_NOBAR")
    a("s_waitcnt vmcnt(0)")
    a("s_barrier")
    a("K3_NOBAR:")
    def ldk(t): a(f"ds_read_b128 v[{KFR[t%2]}:{KFR[t%2]+3}], v{VK} offset:{1024*t}")
    def ldv(t):
        a("s_mov_b64 exec, s[44:45]")
        a(f"ds_read_b128 v[{VFR[t%2]}:{VFR[t%2]+3}], v{VV} offset:{1024*t}")
        a(f"ds_read_b128 v[{VFR[t%2]+4}:{VFR[t%2]+7}], v{VV} offset:{1024*t+512}")
        a("s_mov_b64 exec, -1")
    def qk(t): a(f"v_mfma_f32_32x32x16_bf16 v[{S[t%2]}:{S[t%2]+15}], v[{KFR[t%2]}:{KFR[t%2]+3}], v[{QF}:{QF+3}], v[{NEGM}:{NEGM+15}]")
    def pv(t, j): a(f"v_mfma_f32_32x32x16_bf16 v[{O}:{O+15}], v[{VFR[t%2]+4*j}:{VFR[t%2]+4*j+3}], v[{P+4*j}:{P+4*j+3}], v[{O}:{O+15}]")
    ldk(0); ldk(1); ldv(0)
    a("s_nop 7")
    a(f"v_cmp_lt_f32 vcc, 0x21800000, v{O+8}")
    a("s_cbranch_vccnz K3_RENORM")
    a("K3_RENORM_RET:")
    a("s_waitcnt lgkmcnt(3)")
    qk(0)
    for t in range(4):
        sb = S[t%2]
        if t+2 < 4: ldk(t+2)
        if t+1 < 4: ldv(t+1)
        nout = (1 if t+2 < 4 else 0) + (2 if t+1 < 4 else 0)
        if t+1 < 4:
            a(f"s_waitcnt lgkmcnt({nout})")
            qk(t+1)
        else:
            a("s_waitcnt lgkmcnt(0)")
        if t == 0:
            a("s_nop 9")
        e = lambda i: a(f"v_exp_f32 v{sb+i}, v{sb+i}")
        c = lambda i: a(f"v_cvt_pk_bf16_f32 v{P+i}, v{sb+2*i}, v{sb+2*i+1}")
        e(0); e(1); e(2); e(3); c(0); e(4); e(5); c(1); e(6); e(7); c(2); e(8); c(3); e(9); e(10)
        pv(t, 0)
        e(11); c(4); e(12); e(13); c(5); e(14); e(15); c(6)
        a("s_nop 0")
        c(7)
        a("s_nop 1")
        pv(t, 1)
    a(f"v_add_u32 v{VK}, 4096, v{VK}")
    a(f"v_add_u32 v{VV}, 4096, v{VV}")
    a("s_add_u32 s47, s47, 1")
    a("s_cmp_lt_u32 s47, 8")
    a("s_cbranch_scc1 K3_LOOP")
    a(f"v_subrev_u32 v{VK}, 32768, v{VK}")
    a(f"v_subrev_u32 v{VV}, 32768, v{VV}")
    a("s_nop 15")
    a("s_cmp_eq_u32 s46, 0")
    a("s_cbranch_scc0 K3_DONE")
    a("v_mov_b32 v104, 0x207")
    a("s_mov_b64 s[48:49], 0")
    for i in range(9):
        a(f"v_cmp_class_f32 vcc, v{O+i}, v104")
        a("s_or_b64 s[48:49], s[48:49], vcc")
    a("s_cmp_eq_u64 s[48:49], 0")
    a("s_cbranch_scc1 K3_DONE")
    a("s_mov_b32 s46, 1")
    for i in range(16):
        a(f"v_mov_b32 v{NEGM+i}, 0")
        a(f"v_mov_b32 v{O+i}, 0")
    a(f"v_mov_b32 v{T0}, 0xff800000")
    a("s_mov_b32 s47, 0")
    a("K3_FB_LOOP:")
    a(f"ds_read_b128 v[{KFR[0]}:{KFR[0]+3}], v{VK}")
    a("s_waitcnt lgkmcnt(0)")
    a(f"v_mfma_f32_32x32x16_bf16 v[{S[0]}:{S[0]+15}], v[{KFR[0]}:{KFR[0]+3}], v[{QF}:{QF+3}], v[{NEGM}:{NEGM+15}]")
    a("s_nop 15")
    a("s_nop 3")
    maxtree(S[0], T0, False)
    a(f"v_add_u32 v{VK}, 1024, v{VK}")
    a("s_add_u32 s47, s47, 1")
    a("s_cmp_lt_u32 s47, 32")
    a("s_cbranch_scc1 K3_FB_LOOP")
    a(f"v_subrev_u32 v{VK}, 32768, v{VK}")
    crosshalf_max(T0, T0+1)
    a(f"v_sub_f32 v{T0}, 0, v{T0}")
    for i in range(16):
        a(f"v_mov_b32 v{NEGM+i}, v{T0}")
    a("s_branch K3_MAIN")
    a("K3_RENORM:")
    a("s_nop 3")
    a(f"v_frexp_exp_i32_f32 v104, v{O+8}")
    a("v_add_u32 v104, 90, v104")
    a("v_cndmask_b32 v104, 0, v104, vcc")
    a("v_sub_u32 v105, 0, v104")
    for i in range(16):
        a(f"v_ldexp_f32 v{O+i}, v{O+i}, v105")
    a("v_cvt_f32_i32 v104, v104")
    a(f"v_sub_f32 v{NEGM}, v{NEGM}, v104")
    for i in range(1, 16):
        a(f"v_mov_b32 v{NEGM+i}, v{NEGM}")
    a("s_nop 1")
    a("s_branch K3_RENORM_RET")

    a("K3_DONE:")
    WOF = [24+4*i for i in range(10)] + [80+4*i for i in range(6)]
    a("s_lshl_b32 s7, s3, 15")
    a(f"s_add_u32 s7, s7, {WS_WO}")
    a(f"s_add_u32 s50, s{S_WS}, s7")
    a(f"s_addc_u32 s51, s{S_WS+1}, 0")
    a("v_lshlrev_b32 v107, 4, v1")
    def ldwo(s):
        r = WOF[s%16]
        a(f"global_load_dwordx4 v[{r}:{r+3}], v107, s[50:51] offset:{1024*(s%4)}")
        if s % 4 == 3:
            a("s_add_u32 s50, s50, 4096")
            a("s_addc_u32 s51, s51, 0")
    for s in range(16): ldwo(s)
    a("v_and_b32 v104, 31, v1")
    a("v_lshrrev_b32 v105, 5, v1")
    a("v_lshlrev_b32 v108, 2, v1")
    a("s_mul_i32 s7, s4, 2560")
    a(f"s_add_u32 s7, s7, {XCH}")
    a("v_add_u32 v108, s7, v108")
    a("s_cmp_eq_u32 s5, 0")
    a("s_cbranch_scc1 K3_X1")
    for i in range(9):
        a(f"ds_write_b32 v108, v{O+i} offset:{256*i}")
    a(f"ds_write_b32 v108, v{NEGM} offset:{256*9}")
    a("s_waitcnt lgkmcnt(0)")
    a("K3_X1:")
    a("s_barrier")
    a("s_cmp_eq_u32 s5, 0")
    a("s_cbranch_scc0 K3_X2")
    PB = NEGM + 2
    for i in range(10):
        a(f"ds_read_b32 v{PB+i}, v108 offset:{256*i}")
    a("s_waitcnt lgkmcnt(0)")
    a(f"v_frexp_exp_i32_f32 v120, v{O+8}")
    a(f"v_frexp_exp_i32_f32 v121, v{PB+8}")
    a("v_cvt_f32_i32 v122, v120")
    a("v_cvt_f32_i32 v123, v121")
    a(f"v_sub_f32 v122, v122, v{NEGM}")
    a(f"v_sub_f32 v123, v123, v{PB+9}")
    a("v_max_f32 v124, v122, v123")
    a("v_sub_f32 v122, v122, v124")
    a("v_sub_f32 v123, v123, v124")
    a("v_exp_f32 v122, v122")
    a("v_exp_f32 v123, v123")
    a("v_sub_u32 v120, 0, v120")
    a("v_sub_u32 v121, 0, v121")
    for i in range(9):
        a(f"v_ldexp_f32 v{O+i}, v{O+i}, v120")
        a(f"v_ldexp_f32 v{PB+i}, v{PB+i}, v121")
    for i in range(9):
        a(f"v_mul_f32 v{O+i}, v{O+i}, v122")
        a(f"v_fmac_f32 v{O+i}, v{PB+i}, v123")
    a(f"v_rcp_f32 v124, v{O+8}")
    a("s_nop 0")
    for i in range(8):
        a(f"v_mul_f32 v{O+i}, v{O+i}, v124")
    for i in range(4):
        a(f"v_cvt_pk_bf16_f32 v{O+10+i}, v{O+2*i}, v{O+2*i+1}")
    a(f"s_mul_i32 s7, s4, {OROW}")
    a(f"s_add_u32 s7, s7, {OT}")
    a("v_lshlrev_b32 v108, 5, v104")
    a("v_lshl_add_u32 v108, v105, 3, v108")
    a("v_add_u32 v108, s7, v108")
    a(f"ds_write_b64 v108, v[{O+10}:{O+11}]")
    a(f"ds_write_b64 v108, v[{O+12}:{O+13}] offset:16")
    a("s_waitcnt lgkmcnt(0)")
    a("K3_X2:")
    a("s_barrier")
    a("s_lshl_b32 s7, s3, 7")
    a("v_lshlrev_b32 v106, 2, v104")
    a("v_add_u32 v106, s7, v106")
    for p in range(4):
        a(f"s_add_u32 s8, s{S_WS}, {WS_MODP + p*12288 + 2*2048}")
        a(f"s_addc_u32 s9, s{S_WS+1}, 0")
        a(f"global_load_dword v{64+p}, v106, s[8:9]")
    a("s_lshl_b32 s7, s2, 13")
    a("s_lshl_b32 s8, s3, 6")
    a("s_add_u32 s7, s7, s8")
    a("v_lshlrev_b32 v106, 1, v104")
    a("v_lshl_add_u32 v106, v105, 12, v106")
    a("v_add_u32 v106, s7, v106")
    for r in range(4):
        a(f"global_load_ushort v{68+r}, v106, s[{S_X}:{S_X+1}] offset:{1024*r}")
    a("v_and_b32 v108, 7, v1")
    a(f"s_movk_i32 s7, {OROW}")
    a("v_mul_lo_u32 v108, v108, s7")
    a("v_lshl_add_u32 v108, v105, 4, v108")
    a(f"v_add_u32 v108, {OT}, v108")
    ACC = 112
    for i in range(16):
        a(f"v_mov_b32 v{ACC+i}, 0")
    OF = [8, 12, 16, 20]
    for s in range(4):
        a(f"ds_read_b128 v[{OF[s]}:{OF[s]+3}], v108 offset:{32*s}")
    for s in range(32):
        r = WOF[s%16]
        if s < 16:
            a(f"s_waitcnt vmcnt({15-s+8+min(s,16)}) lgkmcnt({min(3,31-s)})")
        else:
            a(f"s_waitcnt vmcnt({31-s}) lgkmcnt({min(3,31-s)})")
        a(f"v_mfma_f32_32x32x16_bf16 v[{ACC}:{ACC+15}], v[{OF[s%4]}:{OF[s%4]+3}], v[{r}:{r+3}], v[{ACC}:{ACC+15}]")
        if s + 16 < 32: ldwo(s+16)
        if s + 4 < 32:
            a(f"ds_read_b128 v[{OF[s%4]}:{OF[s%4]+3}], v108 offset:{32*(s+4)}")
    a("v_lshlrev_b32 v109, 5, v1")
    fin1 = load_mod_vec(a, [3], 109, 8, [40], 8)
    fin2 = load_mod_vec(a, [4], 109, 72, [48], 8)
    a("s_nop 7")
    import os
    if os.environ.get("K3DBG"):
        a("s_lshl_b32 s7, s2, 4")
        a("s_add_u32 s7, s7, s3")
        a("s_mul_i32 s7, s7, 3072")
        a("s_add_u32 s7, s7, 0x2000000")
        a(f"s_add_u32 s8, s{S_WS}, s7")
        a(f"s_addc_u32 s9, s{S_WS+1}, 0")
        a("v_lshlrev_b32 v110, 4, v1")
        a("s_waitcnt vmcnt(0)")
        a(f"global_store_dwordx4 v110, v[{ACC}:{ACC+3}], s[8:9]")
        a(f"global_store_dwordx4 v110, v[64:67], s[8:9] offset:1024")
        a(f"global_store_dwordx4 v110, v[68:71], s[8:9] offset:2048")
        a("s_waitcnt vmcnt(0)")
    a("v_add_f32 v64, v64, v65")
    a("v_add_f32 v66, v66, v67")
    a("v_add_f32 v64, v64, v66")
    round_bf16(a, 64)
    for r in range(4):
        round_bf16(a, ACC+r)
        a(f"v_mul_f32 v{ACC+r}, v{ACC+r}, v64")
        round_bf16(a, ACC+r)
        a(f"v_lshlrev_b32 v{68+r}, 16, v{68+r}")
        a(f"v_add_f32 v{ACC+r}, v{ACC+r}, v{68+r}")
        round_bf16(a, ACC+r)
    a("s_lshl_b32 s7, s3, 7")
    a("v_lshlrev_b32 v108, 2, v104")
    a("v_lshl_add_u32 v108, v105, 13, v108")
    a("v_add_u32 v108, s7, v108")
    for r in range(4):
        a(f"ds_write_b32 v108, v{ACC+r} offset:{X1T + 2048*r}")
    a("s_waitcnt lgkmcnt(0)")
    a("s_barrier")
    a("s_cmp_eq_u32 s5, 0")
    a("s_cbranch_scc0 K3_END")
    a("s_lshl_b32 s7, s4, 11")
    a("v_lshlrev_b32 v108, 5, v1")
    a("v_add_u32 v108, s7, v108")
    a("s_waitcnt vmcnt(0)")
    fin1(); fin2()
    a(f"ds_read_b128 v[8:11], v108 offset:{X1T}")
    a(f"ds_read_b128 v[12:15], v108 offset:{X1T+16}")
    for j in range(8):
        a(f"v_add_f32 v{48+j}, 1.0, v{48+j}")
    for j in range(8):
        round_bf16(a, 48+j)
    a("s_waitcnt lgkmcnt(0)")
    for j in range(4):
        a(f"v_cvt_pk_bf16_f32 v{16+j}, v{8+2*j}, v{9+2*j}")
    a("v_add_f32 v20, v8, v9")
    for j in range(2, 8):
        a(f"v_add_f32 v20, v20, v{8+j}")
    wave_sum(a, 20, 8)
    a("v_mul_f32 v20, 0x3b000000, v20")
    for j in range(8):
        a(f"v_sub_f32 v{8+j}, v{8+j}, v20")
    a("v_mul_f32 v21, v8, v8")
    for j in range(1, 8):
        a(f"v_fmac_f32 v21, v{8+j}, v{8+j}")
    wave_sum(a, 21, 8)
    a("v_mov_b32 v22, 0x3727c5ac")
    a("v_fmac_f32 v22, 0x3b000000, v21")
    a("v_rsq_f32 v22, v22")
    a("s_nop 0")
    for j in range(8):
        a(f"v_mul_f32 v{8+j}, v{8+j}, v22")
    for j in range(8):
        round_bf16(a, 8+j)
    for j in range(8):
        a(f"v_fma_f32 v{8+j}, v{8+j}, v{48+j}, v{40+j}")
    for j in range(4):
        a(f"v_cvt_pk_bf16_f32 v{24+j}, v{8+2*j}, v{9+2*j}")
    a("s_lshl_b32 s7, s6, 10")
    a("v_lshlrev_b32 v108, 4, v1")
    a("v_add_u32 v108, s7, v108")
    ws_ptr(a, 8, WS_X1)
    a("global_store_dwordx4 v108, v[16:19], s[8:9]")
    ws_ptr(a, 10, WS_H2)
    a("global_store_dwordx4 v108, v[24:27], s[10:11]")
    a("K3_END:")
    a("s_endpgm")
    return name, 128, K3_GRID, 1024, K3_LDS
```

```python
from asmlib import *
K5_GRID = 256
SLOT = 28672
NSLOT = 5
K5_LDS = SLOT * NSLOT

def gen_k5(a):
    name = "ffn1_kernel"
    kernel_begin(a, name)
    load_kernargs(a)
    a(f"s_cmp_ge_u32 s2, {K5_GRID}")
    a("s_cbranch_scc1 K5_END")
    a("v_and_b32 v1, 63, v0")
    a("v_lshrrev_b32 v2, 6, v0")
    a("s_nop 0")
    a("v_readfirstlane_b32 s3, v2")
    a("s_and_b32 s4, s2, 7")
    a("s_lshr_b32 s5, s2, 3")
    a("s_and_b32 s6, s4, 1")
    a("s_lshl_b32 s6, s6, 3")
    a("s_and_b32 s7, s5, 7")
    a("s_add_u32 s6, s6, s7")
    a("s_lshr_b32 s7, s4, 1")
    a("s_lshl_b32 s7, s7, 2")
    a("s_lshr_b32 s8, s5, 3")
    a("s_add_u32 s7, s7, s8")
    a("s_lshl_b32 s9, s6, 2")
    a("s_add_u32 s9, s9, s3")
    a("v_and_b32 v3, 31, v1")
    a("v_lshrrev_b32 v4, 5, v1")
    a("v_lshlrev_b32 v5, 10, v3")
    a("v_lshl_add_u32 v5, v4, 4, v5")
    a("v_lshlrev_b32 v6, 4, v1")
    for sl in range(NSLOT):
        a(f"v_add_u32 v{8+sl}, {sl*SLOT}, v6")
    a("s_waitcnt lgkmcnt(0)")
    a("s_mul_i32 s10, s7, 229376")
    a("s_mul_i32 s11, s3, 7168")
    a("s_add_u32 s10, s10, s11")
    a(f"s_add_u32 s10, s10, {WS_WGU}")
    a(f"s_add_u32 s12, s{S_WS}, s10")
    a(f"s_addc_u32 s13, s{S_WS+1}, 0")
    a("s_mov_b32 s14, 229376")
    a("s_mov_b32 s15, 0x00020000")
    a("s_lshl_b32 s10, s9, 15")
    a(f"s_add_u32 s10, s10, {WS_H2}")
    a(f"s_add_u32 s44, s{S_WS}, s10")
    a(f"s_addc_u32 s45, s{S_WS+1}, 0")
    def ldw(stage):
        sl = stage % NSLOT
        a(f"s_add_u32 m0, s11, {sl*SLOT}")
        a(f"s_mov_b32 s46, {stage*SLOT}")
        for f in range(7):
            if f == 4:
                a(f"s_add_u32 m0, s11, {sl*SLOT+4096}")
                a(f"s_mov_b32 s46, {stage*SLOT+4096}")
            a(f"buffer_load_dwordx4 v6, s[12:15], s46 offen offset:{1024*(f%4)} lds")
    XF = 128
    def ldx(lo, hi):
        for s in range(lo, hi):
            a(f"global_load_dwordx4 v[{XF+4*s}:{XF+4*s+3}], v5, s[44:45] offset:{32*s}")
    ldw(0); ldx(0, 8); ldw(1); ldx(8, 16); ldw(2); ldx(16, 32); ldw(3)
    for i in range(112):
        a(f"v_accvgpr_write_b32 a{i}, 0")
    a("s_waitcnt vmcnt(45)")
    a("s_barrier")
    NB = 8
    WF = 16
    D = 6
    total = 8*28
    def rd(n):
        stage, r = divmod(n, 28)
        b = WF + 4*(n % NB)
        a(f"ds_read_b128 v[{b}:{b+3}], v{8 + stage % NSLOT} offset:{1024*r}")
    for n in range(D): rd(n)
    waits = {0: 38, 1: 30, 2: 14, 3: 14, 4: 14, 5: 7, 6: 0}
    for n in range(total):
        stage, r = divmod(n, 28)
        ks, t = divmod(r, 7)
        if r == 14 and stage < 7:
            a(f"s_waitcnt vmcnt({waits[stage]})")
            a("s_barrier")
            if stage + 4 < 8: ldw(stage + 4)
        rem = min(D, total - n) - 1
        a(f"s_waitcnt lgkmcnt({rem})")
        b = WF + 4*(n % NB)
        xs = XF + 4*(stage*4 + ks)
        a(f"v_mfma_f32_32x32x16_bf16 a[{16*t}:{16*t+15}], v[{b}:{b+3}], v[{xs}:{xs+3}], a[{16*t}:{16*t+15}]")
        if n + D < total: rd(n + D)
    a("s_nop 15")
    a("s_nop 3")
    a("s_mul_i32 s10, s9, 112")
    a("s_mul_i32 s11, s7, 7")
    a("s_add_u32 s10, s10, s11")
    a("s_lshl_b32 s10, s10, 10")
    a(f"s_add_u32 s10, s10, {WS_HF}")
    a(f"s_add_u32 s44, s{S_WS}, s10")
    a(f"s_addc_u32 s45, s{S_WS+1}, 0")
    for t in range(7):
        b = 16 + 24*(t % 2)
        for r in range(16):
            a(f"v_accvgpr_read_b32 v{b+r}, a{16*t+r}")
        for r in range(8):
            a(f"v_max_f32 v{b+r}, 0, v{b+r}")
        for r in range(8):
            a(f"v_mul_f32 v{b+r}, v{b+r}, v{b+8+r}")
        for r in range(4):
            a(f"v_cvt_pk_bf16_f32 v{b+16+r}, v{b+2*r}, v{b+2*r+1}")
        if t == 4:
            a("s_add_u32 s44, s44, 4096")
            a("s_addc_u32 s45, s45, 0")
        a(f"global_store_dwordx4 v6, v[{b+16}:{b+19}], s[44:45] offset:{1024*(t%4)}")
    a("K5_END:")
    a("s_endpgm")
    return name, 368, K5_GRID, 256, K5_LDS, 256
```

```python
from asmlib import *
K6_GRID = 256
K6_LDS = 65536

def gen_k6(a):
    name = "ffn2_kernel"
    kernel_begin(a, name)
    load_kernargs(a)
    a(f"s_cmp_ge_u32 s2, {K6_GRID}")
    a("s_cbranch_scc1 K6_END")
    a("v_and_b32 v1, 63, v0")
    a("v_lshrrev_b32 v2, 6, v0")
    a("s_nop 0")
    a("v_readfirstlane_b32 s3, v2")
    a("s_and_b32 s4, s2, 7")
    a("s_lshr_b32 s5, s2, 3")
    a("s_and_b32 s6, s4, 3")
    a("s_lshl_b32 s6, s6, 3")
    a("s_and_b32 s7, s5, 7")
    a("s_add_u32 s6, s6, s7")
    a("s_lshr_b32 s7, s4, 2")
    a("s_lshl_b32 s7, s7, 2")
    a("s_lshr_b32 s8, s5, 3")
    a("s_add_u32 s7, s7, s8")
    a("v_lshlrev_b32 v6, 4, v1")
    a("v_and_b32 v3, 31, v1")
    a("v_lshrrev_b32 v4, 5, v1")
    a("s_waitcnt lgkmcnt(0)")
    a("s_mul_i32 s9, s3, 28")
    a("s_mul_i32 s10, s6, 224")
    a("s_add_u32 s10, s10, s9")
    a("s_lshl_b32 s10, s10, 10")
    a(f"s_add_u32 s10, s10, {WS_HF}")
    a(f"s_add_u32 s44, s{S_WS}, s10")
    a(f"s_addc_u32 s45, s{S_WS+1}, 0")
    a("s_add_u32 s46, s44, 114688")
    a("s_addc_u32 s47, s45, 0")
    a("s_mul_i32 s10, s7, 224")
    a("s_add_u32 s10, s10, s9")
    a("s_lshl_b32 s10, s10, 10")
    a(f"s_add_u32 s10, s10, {WS_WD}")
    a(f"s_add_u32 s48, s{S_WS}, s10")
    a(f"s_addc_u32 s49, s{S_WS+1}, 0")
    a("s_add_u32 s50, s48, 114688")
    a("s_addc_u32 s51, s49, 0")
    NR = 14
    def ld(ks):
        b = 16 + 16*(ks % NR)
        for i, sp in enumerate((44, 46, 48, 50)):
            a(f"global_load_dwordx4 v[{b+4*i}:{b+4*i+3}], v6, s[{sp}:{sp+1}] offset:{1024*(ks%4)}")
        if ks % 4 == 3:
            for sp in (44, 46, 48, 50):
                a(f"s_add_u32 s{sp}, s{sp}, 4096")
                a(f"s_addc_u32 s{sp+1}, s{sp+1}, 0")
    for ks in range(NR): ld(ks)
    for i in range(64):
        a(f"v_accvgpr_write_b32 a{i}, 0")
    for ks in range(28):
        rem = min(NR, 28 - ks) - 1
        a(f"s_waitcnt vmcnt({4*rem})")
        b = 16 + 16*(ks % NR)
        for ri in range(2):
            for ci in range(2):
                t = 2*ri + ci
                a(f"v_mfma_f32_32x32x16_bf16 a[{16*t}:{16*t+15}], v[{b+8+4*ci}:{b+8+4*ci+3}], v[{b+4*ri}:{b+4*ri+3}], a[{16*t}:{16*t+15}]")
        if ks + NR < 28: ld(ks + NR)
    a("s_lshr_b32 s8, s3, 1")
    a("s_and_b32 s9, s3, 1")
    a("s_lshl_b32 s10, s6, 1")
    a("s_add_u32 s10, s10, s8")
    a("s_lshl_b32 s10, s10, 15")
    a("s_lshl_b32 s11, s7, 1")
    a("s_add_u32 s11, s11, s9")
    a("s_lshl_b32 s12, s11, 6")
    a("s_add_u32 s10, s10, s12")
    a("v_lshlrev_b32 v7, 10, v3")
    a("v_lshl_add_u32 v7, v4, 3, v7")
    a("v_add_u32 v7, s10, v7")
    ws_ptr(a, 44, WS_X1)
    for g in range(4):
        a(f"global_load_dwordx2 v[{16+2*g}:{17+2*g}], v7, s[44:45] offset:{16*g}")
    a("s_lshl_b32 s12, s11, 7")
    a("v_lshlrev_b32 v8, 4, v4")
    a("v_add_u32 v8, s12, v8")
    for p in range(4):
        a(f"s_add_u32 s46, s{S_WS}, {WS_MODP + p*12288 + 5*2048}")
        a(f"s_addc_u32 s47, s{S_WS+1}, 0")
        for g in range(4):
            b = 32 + 16*p + 4*g
            a(f"global_load_dwordx4 v[{b}:{b+3}], v8, s[46:47] offset:{32*g}")
    a("s_nop 7")
    a("v_lshlrev_b32 v9, 2, v1")
    a("s_lshl_b32 s12, s3, 14")
    a("v_add_u32 v10, s12, v9")
    for t in range(4):
        for r in range(16):
            a(f"v_accvgpr_read_b32 v{96+r}, a{16*t+r}")
        for r in range(16):
            a(f"ds_write_b32 v10, v{96+r} offset:{4096*t+256*r}")
    a("s_waitcnt lgkmcnt(0)")
    a("s_barrier")
    a("s_lshl_b32 s12, s3, 12")
    a("v_add_u32 v10, s12, v9")
    for w in range(4):
        for r in range(16):
            a(f"ds_read_b32 v{96+16*w+r}, v10 offset:{16384*w+256*r}")
    a("s_waitcnt lgkmcnt(0)")
    for r in range(16):
        a(f"v_add_f32 v{96+r}, v{96+r}, v{112+r}")
        a(f"v_add_f32 v{128+r}, v{128+r}, v{144+r}")
    for r in range(16):
        a(f"v_add_f32 v{96+r}, v{96+r}, v{128+r}")
    a("s_waitcnt vmcnt(0)")
    for r in range(16):
        a(f"v_add_f32 v{32+r}, v{32+r}, v{48+r}")
        a(f"v_add_f32 v{64+r}, v{64+r}, v{80+r}")
    for r in range(16):
        a(f"v_add_f32 v{32+r}, v{32+r}, v{64+r}")
    for r in range(16):
        round_bf16(a, 32+r)
        round_bf16(a, 96+r)
        a(f"v_mul_f32 v{96+r}, v{96+r}, v{32+r}")
        round_bf16(a, 96+r)
    for g in range(4):
        a(f"v_lshlrev_b32 v{48+4*g}, 16, v{16+2*g}")
        a(f"v_and_b32 v{49+4*g}, 0xffff0000, v{16+2*g}")
        a(f"v_lshlrev_b32 v{50+4*g}, 16, v{17+2*g}")
        a(f"v_and_b32 v{51+4*g}, 0xffff0000, v{17+2*g}")
    for r in range(16):
        a(f"v_add_f32 v{96+r}, v{96+r}, v{48+r}")
    for g in range(4):
        a(f"v_cvt_pk_bf16_f32 v{16+2*g}, v{96+4*g}, v{97+4*g}")
        a(f"v_cvt_pk_bf16_f32 v{17+2*g}, v{98+4*g}, v{99+4*g}")
    for g in range(4):
        a(f"global_store_dwordx2 v7, v[{16+2*g}:{17+2*g}], s[{S_OUT}:{S_OUT+1}] offset:{16*g}")
    a("K6_END:")
    a("s_endpgm")
    return name, 256+64, K6_GRID, 256, K6_LDS, 256
```

```python
import sys
from asmlib import *
from k1 import gen_k1
from k2 import gen_k2
gens = [gen_k1, gen_k2]
try:
    from k3 import gen_k3
    gens.append(gen_k3)
    from k5 import gen_k5
    gens.append(gen_k5)
    from k6 import gen_k6
    gens.append(gen_k6)
except ImportError as e:
    print("partial:", e, file=sys.stderr)

HEADER = open("adaLN_cond__grouped_kv_mqa__glu_gated_reglu__prompt.s.ref").read().split("; Override launch")[0]
def build(gens, out):
    a = Asm()
    infos = []
    for g in gens:
        infos.append(g(a))
    s = HEADER
    infos = [tuple(i) + ((None,) if len(i)==5 else ()) for i in infos]
    for (name, vg, grid, blk, lds, acc) in infos:
        s += f"; @launch kernel={name} grid=({grid},1,1) block=({blk},1,1) lds={lds}\n"
    s += '.amdgcn_target "amdgcn-amd-amdhsa--gfx950"\n.text\n'
    s += a.text()
    s += '.section .rodata,"a"\n'
    for (name, vg, grid, blk, lds, acc) in infos:
        s += ".p2align 6\n" + descriptor(name, vg, accum=acc)
    open(out, "w").write(s)
if __name__ == "__main__":
    out = sys.argv[1] if len(sys.argv) > 1 else "adaLN_cond__grouped_kv_mqa__glu_gated_reglu__prompt.s"
    build(gens, out)
    print("wrote", out)
```
